```python
import torch

def _softmax(x, axis=-1):
    return torch.softmax(x, dim=axis)
def _gelu(x):
    return torch.nn.functional.gelu(x, approximate="tanh")
def _silu(x):
    return torch.nn.functional.silu(x)
def _sigmoid(x):
    return torch.sigmoid(x)
def _layernorm(x, axis=-1, eps=1e-5):
    m = x.mean(dim=axis, keepdim=True)
    v = x.var(dim=axis, keepdim=True, unbiased=False)
    return (x - m) / torch.sqrt(v + eps)
def _scatter_add(tgt, idx, src, axis=0):
    return tgt.clone().index_add_(axis, idx, src)
def _segment_sum(src, seg, n):
    out = torch.zeros((n,) + src.shape[1:], dtype=src.dtype)
    return out.index_add_(0, seg, src)
def _pad(x, pw):
    flat = tuple(v for pair in reversed(pw) for v in pair)
    return torch.nn.functional.pad(x, flat)

kernel_name = 'gated_mix__softmax_full_mha__glu_gated_bilinear__prompt'

def setup_inputs():

    _w = (lambda a: (lambda t: t.to(torch.bfloat16) if t.is_floating_point() else t)(torch.as_tensor(a)))
    def _A_setup():
        B, S, D = 1, 2048, 512
        return {
            "x": _w((lambda *s: torch.randn(*s, dtype=torch.bfloat16) * 0.05)(B, S, D)),
            "wqkv": _w((lambda *s: torch.randn(*s, dtype=torch.bfloat16) * 0.8)(D, 3 * D)),
            "wo": _w((lambda *s: torch.randn(*s, dtype=torch.bfloat16) * 0.05)(D, D)),
        }
    _A_in = _A_setup()

    def _B_setup():
        B, S, D, F = 1, 2048, 512, 1792
        return {
            "x": _w((lambda *s: torch.randn(*s, dtype=torch.bfloat16) * 0.05)(B, S, D)),
            "w_gate": _w((lambda *s: torch.randn(*s, dtype=torch.bfloat16) * 1.6)(D, F) * (D ** -0.5)),
            "w_up": _w((lambda *s: torch.randn(*s, dtype=torch.bfloat16) * 1.6)(D, F) * (D ** -0.5)),
            "w_down": _w((lambda *s: torch.randn(*s, dtype=torch.bfloat16) * 1.6)(F, D) * (F ** -0.5)),
        }
    _B_in = _B_setup()

    return {
        "A_x": _A_in["x"],
        "A_wqkv": _A_in["wqkv"],
        "A_wo": _A_in["wo"],
        "B_x": _B_in["x"],
        "B_w_gate": _B_in["w_gate"],
        "B_w_up": _B_in["w_up"],
        "B_w_down": _B_in["w_down"],
        "gate_w": _w((lambda *s: torch.randn(*s, dtype=torch.bfloat16) * 0.05)(512) * 16.0),
    }

def reference(A_x, A_wqkv, A_wo, B_x, B_w_gate, B_w_up, B_w_down, gate_w):
    def _A_ref(x, wqkv, wo):
        B, S, D = x.shape
        H = 32; Dh = D // H
        qkv = (lambda x, *d: x.permute(*d))((x @ wqkv).reshape(B, S, 3, H, Dh), 2, 0, 3, 1, 4)
        q, k, v = qkv[0], qkv[1], qkv[2]
        scale = Dh ** -0.5
        scores = torch.einsum("bhqd,bhkd->bhqk", q, k) * scale
        p = _softmax(scores, axis=-1)
        o = torch.einsum("bhqk,bhkd->bhqd", p, v)
        return (lambda x, *d: x.permute(*d))(o, 0, 2, 1, 3).reshape(B, S, D) @ wo

    def _B_ref(x, w_gate, w_up, w_down):
        g = torch.einsum("bsd,df->bsf", x, w_gate)
        u = torch.einsum("bsd,df->bsf", x, w_up)
        h = g * u
        return torch.einsum("bsf,fd->bsd", h, w_down)

    x = A_x
    g = _sigmoid((x * gate_w).sum(-1, keepdims=True))
    a = _A_ref(x, A_wqkv, A_wo)
    b = _B_ref(x, B_w_gate, B_w_up, B_w_down)
    return g * a + (1 - g) * b
```

```python
import sys
QF=0x000000; KVF=0x200000; AF=0x600000; G=0xF00000
WS_BYTES=0x2000000
NAME="gated_mix__softmax_full_mha__glu_gated_bilinear__prompt"

class A:
    def __init__(s): s.l=[]
    def __call__(s, t):
        for x in t.split("\n"):
            x=x.strip()
            if x: s.l.append(("" if x.endswith(":") else "    ")+x)
    def text(s): return "\n".join(s.l)+"\n"
def vr(b,n): return f"v[{b}:{b+n-1}]"
def sr(b,n): return f"s[{b}:{b+n-1}]"
def f32hex(x):
    import struct; return "0x%08x"%struct.unpack("<I",struct.pack("<f",x))[0]

def srd(e, d, p, nbytes):
    e(f"s_mov_b32 s{d}, s{p}")
    e(f"s_and_b32 s{d+1}, s{p+1}, 0xffff")
    e(f"s_mov_b32 s{d+2}, {nbytes}")
    e(f"s_mov_b32 s{d+3}, 0x00020000")

def header(e, name):
    e(f".globl {name}\n.p2align 8\n.type {name},@function\n{name}:")
def kd(name, vg, sg=102):
    acc=(vg+3)//4*4
    return f""".section .rodata,"a"
.p2align 6
.amdhsa_kernel {name}
  .amdhsa_next_free_vgpr {vg}
  .amdhsa_next_free_sgpr {sg}
  .amdhsa_accum_offset {acc}
  .amdhsa_group_segment_fixed_size 0
  .amdhsa_kernarg_size 88
  .amdhsa_user_sgpr_count 2
  .amdhsa_user_sgpr_kernarg_segment_ptr 1
  .amdhsa_system_sgpr_workgroup_id_x 1
.end_amdhsa_kernel
.text
"""
def mfma(e,d,a,b,c=None):
    cc = vr(d,16) if c is None else c
    e(f"v_mfma_f32_32x32x16_bf16 {vr(d,16)}, {vr(a,4)}, {vr(b,4)}, {cc}")
def dma(e, voff, s, soff, m0base, m0imm, ioff=0, stmp=30):
    e(f"s_add_u32 m0, s{m0base}, {m0imm}")
    if soff==0: so="0"; e("s_nop 0")
    else:
        e(f"s_mov_b32 s{stmp}, {soff}"); so=f"s{stmp}"
    e(f"buffer_load_dwordx4 v{voff}, {sr(s,4)}, {so} offen{' offset:%d'%ioff if ioff else ''} lds")

def xread_addrs(e, vX, vlane, tmp, wave_off_sgpr):
    e(f"v_and_b32 v{tmp}, 31, v{vlane}")
    e(f"v_lshlrev_b32 v{vX}, 7, v{tmp}")
    e(f"v_bfe_u32 v{tmp}, v{vlane}, 1, 3")
    e(f"v_lshrrev_b32 v{tmp+1}, 5, v{vlane}")
    e(f"v_xor_b32 v{tmp}, v{tmp}, v{tmp+1}")
    e(f"v_lshl_add_u32 v{vX}, v{tmp}, 4, v{vX}")
    e(f"v_add_u32 v{vX}, s{wave_off_sgpr}, v{vX}")
    for s in range(1,4): e(f"v_xor_b32 v{vX+s}, {s<<5}, v{vX}")
def xsrc_addr(e, vS, vlane, tmp, s_row0, s_wave, stmp):
    e(f"s_lshl_b32 s{stmp}, s{s_wave}, 3")
    e(f"s_add_u32 s{stmp}, s{stmp}, s{s_row0}")
    e(f"v_lshrrev_b32 v{tmp}, 3, v{vlane}")
    e(f"v_add_u32 v{tmp}, s{stmp}, v{tmp}")
    e(f"v_lshlrev_b32 v{vS}, 10, v{tmp}")
    e(f"s_and_b32 s{stmp}, s{s_wave}, 1")
    e(f"s_lshl_b32 s{stmp}, s{stmp}, 2")
    e(f"v_lshrrev_b32 v{tmp}, 4, v{vlane}")
    e(f"v_add_u32 v{tmp}, s{stmp}, v{tmp}")
    e(f"v_and_b32 v{tmp+1}, 7, v{vlane}")
    e(f"v_xor_b32 v{tmp}, v{tmp}, v{tmp+1}")
    e(f"v_lshl_add_u32 v{vS}, v{tmp}, 4, v{vS}")
def tr_lane_part(e, vD, vlane, tmp, swap23=False):
    e(f"v_bfe_u32 v{tmp}, v{vlane}, 2, 2")
    e(f"v_lshlrev_b32 v{vD}, 6, v{tmp}")
    e(f"v_bfe_u32 v{tmp}, v{vlane}, 4, 1")
    e(f"v_lshl_add_u32 v{vD}, v{tmp}, 5, v{vD}")
    if not swap23:
        e(f"v_and_b32 v{tmp}, 3, v{vlane}")
        e(f"v_lshl_add_u32 v{vD}, v{tmp}, 3, v{vD}")
    else:
        e(f"v_and_b32 v{tmp}, 1, v{vlane}")
        e(f"v_lshl_add_u32 v{vD}, v{tmp}, 4, v{vD}")
        e(f"v_bfe_u32 v{tmp}, v{vlane}, 1, 1")
        e(f"v_lshl_add_u32 v{vD}, v{tmp}, 3, v{vD}")
def prologue_ids(e, nwg, lab):
    e(f"s_cmp_ge_u32 s2, {nwg}")
    e(f"s_cbranch_scc1 {lab}")
    e("v_lshrrev_b32 v1, 6, v0")
    e("v_and_b32 v2, 63, v0")
    e("v_readfirstlane_b32 s16, v1")
def cvt8(e, d, s):
    for i in range(4): e(f"v_cvt_pk_bf16_f32 v{d+i}, v{s+2*i}, v{s+2*i+1}")

def k_qkv(e):
    n="k1_qkv_kernel"; header(e,n)
    NS=5; SB=28672
    e("s_load_dwordx4 s[20:23], s[0:1], 0")
    e("s_load_dwordx2 s[24:25], s[0:1], 80")
    prologue_ids(e,256,"L_qkv_done")
    e("s_and_b32 s19, s2, 7\ns_lshr_b32 s26, s2, 3")
    e("s_lshr_b32 s17, s19, 1\ns_lshl_b32 s17, s17, 2\ns_lshr_b32 s27, s26, 3\ns_add_u32 s17, s17, s27")
    e("s_and_b32 s18, s19, 1\ns_lshl_b32 s18, s18, 3\ns_and_b32 s27, s26, 7\ns_add_u32 s18, s18, s27")
    e("s_lshl_b32 s28, s17, 7")
    vXs,vWs,vXr,vWr=4,5,6,10
    xsrc_addr(e,vXs,2,12,28,16,27)
    e("s_lshl_b32 s27, s16, 4\nv_lshrrev_b32 v12, 2, v2\nv_add_u32 v12, s27, v12\nv_mul_u32_u24 v5, 3072, v12")
    e("v_and_b32 v12, 3, v2\nv_lshl_add_u32 v5, v12, 4, v5\ns_lshl_b32 s27, s18, 6\nv_add_u32 v5, s27, v5")
    e("s_lshl_b32 s29, s16, 10")
    e("s_waitcnt lgkmcnt(0)")
    srd(e,4,20,2048*1024); srd(e,8,22,512*3072); srd(e,12,24,WS_BYTES)
    def issue(st):
        sb=(st%NS)*SB
        for qq in range(4): dma(e,vXs,4,st*128+qq*32768,29,sb+qq*4096)
        for b in range(3): dma(e,vWs,8,st*64*3072+b*1024,29,sb+16384+b*4096)
    for st in range(NS): issue(st)
    e("s_lshl_b32 s27, s16, 12")
    xread_addrs(e,vXr,2,12,27)
    tr_lane_part(e,vWr,2,12)
    e("v_lshrrev_b32 v12, 5, v2\nv_lshl_add_u32 v10, v12, 9, v10\nv_add_u32 v10, 16384, v10")
    ACC=16
    for i in range(48): e(f"v_mov_b32 v{ACC+i}, 0")
    FR=64
    cur=0
    issued=NS
    for st in range(8):
        e(f"s_waitcnt vmcnt({(issued-1-st)*7})")
        e("s_barrier")
        if st>=1 and st-1+NS<8:
            issue(st-1+NS); issued+=1
        slot=st%NS; base=(slot//2)*2*SB
        if base!=cur:
            for r in [vXr,vXr+1,vXr+2,vXr+3,vWr]: e(f"v_add_u32 v{r}, {(base-cur)&0xffffffff}, v{r}")
            cur=base
        so=slot*SB-base
        def rd(s):
            f=FR+(s%2)*16
            e(f"ds_read_b128 {vr(f,4)}, v{vXr+s} offset:{so}")
            for b in range(3):
                for r in range(2):
                    e(f"ds_read_b64_tr_b16 {vr(f+4+4*b+2*r,2)}, v{vWr} offset:{so+b*4096+(4*s+r)*256}")
        rd(0)
        for s in range(4):
            if s<3: rd(s+1); e("s_waitcnt lgkmcnt(7)")
            else: e("s_waitcnt lgkmcnt(0)")
            f=FR+(s%2)*16
            mfma(e,ACC,f+4,f); mfma(e,ACC+16,f+8,f); mfma(e,ACC+32,f,f+12)
    e("s_lshl_b32 s27, s17, 2\ns_add_u32 s27, s27, s16")
    e("v_lshlrev_b32 v4, 4, v2")
    e("s_lshl_b32 s30, s18, 17\ns_lshl_b32 s31, s27, 10\ns_add_u32 s30, s30, s31")
    e("s_lshl_b32 s32, s18, 18\ns_lshl_b32 s31, s27, 11\ns_add_u32 s32, s32, s31")
    e(f"s_add_u32 s32, s32, {KVF}")
    e(f"s_add_u32 s31, s30, 65536\ns_add_u32 s33, s32, 131072")
    e("v_bfe_u32 v12, v2, 4, 1\nv_lshlrev_b32 v5, 17, v12\nv_lshrrev_b32 v12, 5, v2\nv_lshl_add_u32 v5, v12, 8, v5")
    e("v_and_b32 v12, 15, v2\nv_lshl_add_u32 v5, v12, 4, v5")
    e(f"s_mov_b32 s34, {f32hex(0.25*1.4426950408889634)}")
    e("s_nop 7\ns_nop 7")
    for i in range(16): e(f"v_mul_f32 v{ACC+i}, s34, v{ACC+i}")
    for t in range(6): cvt8(e,FR+4*t,ACC+8*t)
    e(f"buffer_store_dwordx4 {vr(FR,4)}, v4, s[12:15], s30 offen")
    e(f"buffer_store_dwordx4 {vr(FR+4,4)}, v4, s[12:15], s31 offen")
    e(f"buffer_store_dwordx4 {vr(FR+8,4)}, v4, s[12:15], s32 offen")
    e(f"buffer_store_dwordx4 {vr(FR+12,4)}, v4, s[12:15], s33 offen")
    e(f"buffer_store_dwordx4 {vr(FR+16,4)}, v5, s[12:15], s32 offen offset:1024")
    e(f"buffer_store_dwordx4 {vr(FR+20,4)}, v5, s[12:15], s32 offen offset:1536")
    e("L_qkv_done:\ns_endpgm")
    return n, kd(n,96,40), f"; @launch kernel={n} grid=(256,1,1) block=(256,1,1) lds={NS*SB}"

def k_gu(e):
    n="k1_gu_kernel"; header(e,n)
    NS=3; SB=49152
    e("s_load_dwordx2 s[20:21], s[0:1], 0")
    e("s_load_dwordx4 s[36:39], s[0:1], 32")
    e("s_load_dwordx2 s[24:25], s[0:1], 80")
    prologue_ids(e,224,"L_gu_done")
    e("s_and_b32 s19, s2, 7\ns_lshr_b32 s26, s2, 3")
    e("s_mul_i32 s27, s26, 37\ns_lshr_b32 s27, s27, 8")
    e("s_lshr_b32 s17, s19, 1\ns_lshl_b32 s17, s17, 2\ns_add_u32 s17, s17, s27")
    e("s_mul_i32 s27, s27, 7\ns_sub_u32 s27, s26, s27")
    e("s_and_b32 s18, s19, 1\ns_mul_i32 s18, s18, 7\ns_add_u32 s18, s18, s27")
    e("s_lshl_b32 s28, s17, 7")
    vXs,vWs,vXr,vWr=4,5,6,10
    xsrc_addr(e,vXs,2,12,28,16,27)
    e("s_lshl_b32 s27, s16, 2\nv_bfe_u32 v12, v2, 2, 2\nv_add_u32 v12, s27, v12\nv_mul_u32_u24 v5, 3584, v12")
    e("v_lshrrev_b32 v12, 4, v2\nv_lshl_add_u32 v5, v12, 6, v5")
    e("v_and_b32 v12, 3, v2\nv_lshl_add_u32 v5, v12, 4, v5\ns_lshl_b32 s27, s18, 8\nv_add_u32 v5, s27, v5")
    e("s_lshl_b32 s29, s16, 10")
    e("s_waitcnt lgkmcnt(0)")
    srd(e,4,20,2048*1024); srd(e,8,36,512*3584); srd(e,40,38,512*3584); srd(e,12,24,WS_BYTES)
    def issue(st):
        sb=(st%NS)*SB
        for qq in range(2): dma(e,vXs,4,st*128+qq*65536,29,sb+qq*8192)
        for m,s in ((0,8),(1,40)):
            for qq in range(2): dma(e,vWs,s,(st*64+32*qq)*3584,29,sb+16384+m*16384+qq*8192)
    for st in range(NS): issue(st)
    e("s_and_b32 s27, s16, 1\ns_lshl_b32 s27, s27, 13")
    xread_addrs(e,vXr,2,12,27)
    tr_lane_part(e,vWr,2,12)
    e("v_lshrrev_b32 v12, 5, v2\nv_lshl_add_u32 v10, v12, 11, v10")
    e("s_lshr_b32 s27, s16, 1\ns_lshl_b32 s27, s27, 8\ns_add_u32 s27, s27, 16384\nv_add_u32 v10, s27, v10")
    ACC=16
    for i in range(64): e(f"v_mov_b32 v{ACC+i}, 0")
    FR=80
    cur=0; issued=NS
    for st in range(8):
        e(f"s_waitcnt vmcnt({(issued-1-st)*6})")
        e("s_barrier")
        if st>=1 and st-1+NS<8:
            issue(st-1+NS); issued+=1
        base=(st%NS)*SB
        if base!=cur:
            for r in [vXr,vXr+1,vXr+2,vXr+3,vWr]: e(f"v_add_u32 v{r}, {(base-cur)&0xffffffff}, v{r}")
            cur=base
        def rd(s):
            f=FR+(s%2)*16
            for t in range(2): e(f"ds_read_b128 {vr(f+4*t,4)}, v{vXr+s} offset:{t*4096}")
            for m in range(2):
                for r in range(2):
                    e(f"ds_read_b64_tr_b16 {vr(f+8+4*m+2*r,2)}, v{vWr} offset:{m*16384+(4*s+r)*1024}")
        rd(0)
        for s in range(4):
            if s<3: rd(s+1); e("s_waitcnt lgkmcnt(6)")
            else: e("s_waitcnt lgkmcnt(0)")
            f=FR+(s%2)*16
            for t in range(2):
                for m in range(2): mfma(e,ACC+32*t+16*m,f+8+4*m,f+4*t)
    e("s_lshl_b32 s27, s17, 2\ns_and_b32 s30, s16, 1\ns_lshl_b32 s30, s30, 1\ns_add_u32 s27, s27, s30")
    e(f"s_mul_i32 s27, s27, {144*1024}")
    e("s_lshl_b32 s30, s18, 2\ns_lshr_b32 s31, s16, 1\ns_add_u32 s30, s30, s31\ns_lshl_b32 s30, s30, 11")
    e(f"s_add_u32 s30, s30, s27\ns_add_u32 s30, s30, {AF+32*1024}")
    e(f"s_add_u32 s31, s30, {144*1024}")
    e("v_lshlrev_b32 v4, 4, v2")
    e("s_nop 7\ns_nop 7")
    for t in range(2):
        for i in range(16): e(f"v_mul_f32 v{ACC+32*t+i}, v{ACC+32*t+i}, v{ACC+32*t+16+i}")
        cvt8(e,FR+8*t,ACC+32*t); cvt8(e,FR+8*t+4,ACC+32*t+8)
        e(f"buffer_store_dwordx4 {vr(FR+8*t,4)}, v4, s[12:15], s{30+t} offen")
        e(f"buffer_store_dwordx4 {vr(FR+8*t+4,4)}, v4, s[12:15], s{30+t} offen offset:1024")
    e("L_gu_done:\ns_endpgm")
    return n, kd(n,112,48), f"; @launch kernel={n} grid=(224,1,1) block=(512,1,1) lds={NS*SB}"

def k_att(e):
    n="k2_att_kernel"; header(e,n)
    e("s_load_dwordx2 s[20:21], s[0:1], 0")
    e("s_load_dwordx2 s[22:23], s[0:1], 56")
    e("s_load_dwordx2 s[24:25], s[0:1], 80")
    prologue_ids(e,256,"L_att_done")
    e("s_and_b32 s19, s2, 7\ns_lshr_b32 s26, s2, 3")
    e("s_lshl_b32 s17, s19, 2\ns_and_b32 s27, s26, 3\ns_add_u32 s17, s17, s27")
    e("s_lshr_b32 s18, s26, 2\ns_lshl_b32 s18, s18, 3\ns_add_u32 s18, s18, s16")
    vQ,vC,S,O,Kf,Vf,P=4,16,(32,48),64,(80,84),((88,92),(96,100)),(104,108)
    vL16,vKa,vVa,vD=3,8,9,10
    e("v_lshlrev_b32 v3, 4, v2")
    e("s_lshl_b32 s29, s16, 11")
    e("v_add_u32 v10, s29, v3")
    e(f"s_lshl_b32 s28, s17, 17\ns_add_u32 s28, s28, {KVF}")
    e("s_waitcnt lgkmcnt(0)")
    srd(e,12,24,WS_BYTES); srd(e,4,20,2048*1024); srd(e,8,22,1024)
    e(f"s_lshl_b32 s30, s17, 16\ns_lshl_b32 s31, s18, 10\ns_add_u32 s30, s30, s31")
    e(f"buffer_load_dwordx4 {vr(vQ,4)}, v3, s[12:15], s30 offen")
    def kvround(r):
        e(f"s_add_u32 m0, s29, {r*16384}")
        e(f"s_add_u32 s30, s28, {r*16384}")
        e(f"buffer_load_dwordx4 v{vD}, s[12:15], s30 offen lds")
        e(f"buffer_load_dwordx4 v{vD}, s[12:15], s30 offen offset:1024 lds")
    kvround(0)
    e("s_lshl_b32 s31, s2, 3\ns_add_u32 s31, s31, s16")
    e("s_lshl_b32 s30, s31, 10")
    e(f"buffer_load_dwordx4 v[32:35], v3, s[4:7], s30 offen")
    e(f"buffer_load_dwordx4 v[36:39], v3, s[8:11], 0 offen")
    for r in range(1,8): kvround(r)
    e("v_mov_b32 v8, v3")
    e("v_lshrrev_b32 v12, 5, v2\nv_lshlrev_b32 v9, 8, v12\nv_and_b32 v12, 15, v2\nv_lshl_add_u32 v9, v12, 4, v9\nv_add_u32 v9, 1024, v9")
    e("s_mov_b32 s36, 0x0000ffff\ns_mov_b32 s37, 0x0000ffff")
    for i in range(16): e(f"v_mov_b32 v{Vf[0][0]+i}, 0x3f803f80")
    e("s_waitcnt vmcnt(14)")
    e("v_dot2_f32_bf16 v40, v32, v36, 0")
    e("v_dot2_f32_bf16 v40, v33, v37, v40")
    e("v_dot2_f32_bf16 v40, v34, v38, v40")
    e("v_dot2_f32_bf16 v40, v35, v39, v40")
    e("s_nop 3")
    for sh in (1,2,4,8):
        e(f"v_add_f32_dpp v40, v40, v40 row_shr:{sh} row_mask:0xf bank_mask:0xf bound_ctrl:0")
        e("s_nop 1")
    e("v_add_f32_dpp v40, v40, v40 row_bcast:15 row_mask:0xa bank_mask:0xf\ns_nop 1")
    e("v_add_f32_dpp v40, v40, v40 row_bcast:31 row_mask:0xc bank_mask:0xf\ns_nop 1")
    e(f"v_mul_f32 v40, {f32hex(-1.4426950408889634)}, v40")
    e("v_exp_f32 v40, v40\ns_nop 0\nv_add_f32 v40, 1.0, v40\nv_rcp_f32 v40, v40")
    e(f"s_lshl_b32 s30, s31, 2\ns_add_u32 s30, s30, {G}")
    e("v_mov_b32 v41, 0")
    e("s_mov_b32 s38, 0\ns_brev_b32 s39, 1\ns_mov_b64 exec, s[38:39]")
    e("buffer_store_dword v40, v41, s[12:15], s30 offen")
    e("s_mov_b64 exec, -1")
    e("s_barrier")
    e(f"ds_read_b128 {vr(Kf[0],4)}, v{vKa}")
    e("s_waitcnt lgkmcnt(0)")
    mfma(e,S[0],Kf[0],vQ,"0")
    e("s_nop 15")
    def maxtree(dst, src, init):
        k=0
        if init:
            e(f"v_max3_f32 v{dst}, v{src}, v{src+1}, v{src+2}"); k=3
            e(f"v_max_f32 v{dst}, v{dst}, v{src+3}"); k=4
        while k<16:
            e(f"v_max3_f32 v{dst}, v{dst}, v{src+k}, v{src+k+1}"); k+=2
    maxtree(12,S[0],True)
    e("s_mov_b32 s40, 0")
    e("L_att_setc:")
    e("v_mov_b32 v13, v12\ns_nop 1\nv_permlane32_swap_b32 v12, v13\ns_nop 1\nv_max_f32 v12, v12, v13")
    for i in range(16): e(f"v_sub_f32 v{vC+i}, 0, v12")
    for i in range(16): e(f"v_mov_b32 v{O+i}, 0")
    for i in range(4): e(f"v_mov_b32 v{P[1]+i}, 0")
    e(f"ds_read_b128 {vr(Kf[0],4)}, v{vKa}")
    e(f"ds_read_b128 {vr(Kf[1],4)}, v{vKa} offset:2048")
    e("s_mov_b64 exec, s[36:37]")
    e(f"ds_read_b128 {vr(Vf[0][0],4)}, v{vVa}")
    e(f"ds_read_b128 {vr(Vf[0][1],4)}, v{vVa} offset:512")
    e(f"ds_read_b128 {vr(Vf[1][1],4)}, v{vVa} offset:512")
    e("s_mov_b64 exec, -1")
    e("s_waitcnt lgkmcnt(0)")
    mfma(e,S[0],Kf[0],vQ,vr(vC,16))
    e("s_nop 15")
    def body(wait=None):
        for i in range(8):
            p=i%2; s=S[p]
            if wait is not None and i==6:
                e(f"s_waitcnt vmcnt({wait})\ns_barrier")
            e("s_waitcnt lgkmcnt(0)")
            mfma(e,S[1-p],Kf[1-p],vQ,vr(vC,16))
            for j in (0,1): e(f"v_exp_f32 v{s+j}, v{s+j}")
            mfma(e,O,Vf[1-p][1],P[1])
            e(f"ds_read_b128 {vr(Kf[p],4)}, v{vKa} offset:{(i+2)*2048}")
            e("s_mov_b64 exec, s[36:37]")
            e(f"ds_read_b128 {vr(Vf[1-p][0],4)}, v{vVa} offset:{(i+1)*2048}")
            e(f"ds_read_b128 {vr(Vf[1-p][1],4)}, v{vVa} offset:{(i+1)*2048+512}")
            e("s_mov_b64 exec, -1")
            for j in range(2,8): e(f"v_exp_f32 v{s+j}, v{s+j}")
            cvt8(e,P[0],s)
            for j in (8,9): e(f"v_exp_f32 v{s+j}, v{s+j}")
            mfma(e,O,Vf[p][0],P[0])
            for j in range(10,16): e(f"v_exp_f32 v{s+j}, v{s+j}")
            cvt8(e,P[1],s+8)
        e(f"v_add_u32 v{vKa}, 16384, v{vKa}\nv_add_u32 v{vVa}, 16384, v{vVa}")
    e("s_mov_b32 s41, 8")
    e("s_cmp_lg_u32 s40, 0\ns_cbranch_scc1 L_att_loop")
    body(13)
    body(0)
    e("s_mov_b32 s41, 6")
    e(".p2align 6\nL_att_loop:")
    body()
    e("s_sub_u32 s41, s41, 1\ns_cmp_lg_u32 s41, 0\ns_cbranch_scc1 L_att_loop")
    e("s_nop 1")
    mfma(e,O,Vf[1][1],P[1])
    e("s_waitcnt lgkmcnt(0)")
    e("s_nop 15")
    e(f"v_mov_b32 v12, v{O+8}")
    for i in range(8): e(f"v_fma_f32 v12, v{O+i}, 0, v12")
    e(f"s_mov_b32 s42, {f32hex(2.0**40)}")
    e(f"v_cmp_gt_f32 vcc, s42, v12")
    e("s_cmp_lg_u32 s40, 0\ns_cbranch_scc1 L_att_fin")
    e("s_cmp_eq_u64 vcc, exec\ns_cbranch_scc1 L_att_fin")
    e("s_mov_b32 s40, 1")
    e(f"v_mov_b32 v{vKa}, v3")
    e(f"v_subrev_u32 v{vVa}, 131072, v{vVa}")
    e("v_mov_b32 v12, 0xff800000")
    e("s_mov_b32 s41, 64")
    e("L_att_max:")
    e(f"ds_read_b128 {vr(Kf[0],4)}, v{vKa}")
    e("s_waitcnt lgkmcnt(0)")
    mfma(e,S[0],Kf[0],vQ,"0")
    e(f"v_add_u32 v{vKa}, 2048, v{vKa}")
    e("s_nop 15")
    maxtree(12,S[0],False)
    e("s_sub_u32 s41, s41, 1\ns_cmp_lg_u32 s41, 0\ns_cbranch_scc1 L_att_max")
    e(f"v_mov_b32 v{vKa}, v3")
    e("s_branch L_att_setc")
    e("L_att_fin:")
    e(f"v_rcp_f32 v12, v{O+8}\ns_nop 0")
    for i in range(8): e(f"v_mul_f32 v{O+i}, v{O+i}, v12")
    cvt8(e,P[0],O)
    e(f"s_mul_i32 s30, s18, {144*1024}\ns_lshl_b32 s31, s17, 10\ns_add_u32 s30, s30, s31\ns_add_u32 s30, s30, {AF}")
    e(f"buffer_store_dwordx4 {vr(P[0],4)}, v3, s[12:15], s30 offen")
    e("L_att_done:\ns_endpgm")
    return n, kd(n,112,48), f"; @launch kernel={n} grid=(256,1,1) block=(512,1,1) lds={131072+4096}"

def k_fin(e):
    n="k3_fin_kernel"; header(e,n)
    NS=4; SB=32768; NST=18
    e("s_load_dwordx2 s[20:21], s[0:1], 16")
    e("s_load_dwordx2 s[22:23], s[0:1], 48")
    e("s_load_dwordx2 s[24:25], s[0:1], 80")
    e("s_load_dwordx2 s[34:35], s[0:1], 64")
    prologue_ids(e,256,"L_fin_done")
    e("s_and_b32 s19, s2, 7\ns_lshr_b32 s26, s2, 3")
    e("s_lshl_b32 s17, s19, 2\ns_lshr_b32 s27, s26, 3\ns_add_u32 s17, s17, s27")
    e("s_and_b32 s18, s26, 7")
    vAs,vWs,vAr,vWr=4,5,6,7
    e("s_lshl_b32 s27, s17, 1\ns_lshr_b32 s28, s16, 1\ns_add_u32 s33, s27, s28")
    e(f"s_mul_i32 s27, s33, {144*1024}\ns_and_b32 s28, s16, 1\ns_lshl_b32 s28, s28, 12\ns_add_u32 s27, s27, s28\ns_add_u32 s27, s27, {AF}")
    e("v_lshlrev_b32 v3, 4, v2\nv_add_u32 v4, s27, v3")
    e("v_lshrrev_b32 v12, 5, v2\nv_lshlrev_b32 v5, 12, v12\nv_bfe_u32 v12, v2, 2, 2\nv_lshl_add_u32 v5, v12, 10, v5")
    e("v_bfe_u32 v12, v2, 4, 1\nv_lshl_add_u32 v5, v12, 6, v5\nv_and_b32 v12, 3, v2\nv_lshl_add_u32 v5, v12, 4, v5")
    e("s_lshl_b32 s27, s16, 15\ns_lshl_b32 s28, s18, 7\ns_add_u32 s27, s27, s28\nv_add_u32 v5, s27, v5")
    e("s_lshl_b32 s29, s16, 12")
    e("s_waitcnt lgkmcnt(0)")
    srd(e,4,20,512*1024); srd(e,8,22,1792*1024); srd(e,12,24,WS_BYTES); srd(e,36,34,2048*1024)
    e(f"v_and_b32 v12, 31, v2\nv_lshlrev_b32 v12, 2, v12\ns_lshl_b32 s30, s33, 7\ns_add_u32 s30, s30, {G}")
    e("buffer_load_dword v14, v12, s[12:15], s30 offen")
    def issue(st):
        sb=(st%NS)*SB
        e(f"s_add_u32 m0, s29, {sb}")
        e(f"s_mov_b32 s30, {st*8192}")
        for q in range(4): e(f"buffer_load_dwordx4 v{vAs}, s[12:15], s30 offen offset:{q*1024} lds")
        s,row=(4,st*128) if st<4 else (8,(st-4)*128)
        for q in range(4): dma(e,vWs,s,row*1024+q*8192,29,sb+16384+q*1024)
    for st in range(NS): issue(st)
    e("s_lshr_b32 s27, s16, 1\ns_lshl_b32 s27, s27, 13\nv_add_u32 v6, s27, v3")
    tr_lane_part(e,vWr,2,12,swap23=True)
    e("v_lshrrev_b32 v12, 5, v2\nv_lshl_add_u32 v7, v12, 9, v7")
    e("s_and_b32 s27, s16, 1\ns_lshl_b32 s27, s27, 8\ns_add_u32 s27, s27, 16384\nv_add_u32 v7, s27, v7")
    ACC=16
    for i in range(32): e(f"v_mov_b32 v{ACC+i}, 0")
    FR=48
    cur=0; issued=NS
    for st in range(NST):
        e(f"s_waitcnt vmcnt({(issued-1-st)*8})")
        e("s_barrier")
        if st>=1 and st-1+NS<NST:
            issue(st-1+NS); issued+=1
        slot=st%NS; base=(slot//2)*2*SB
        if base!=cur:
            for r in [vAr,vWr]: e(f"v_add_u32 v{r}, {(base-cur)&0xffffffff}, v{r}")
            cur=base
        so=slot*SB-base
        def rd(s):
            f=FR+(s%4)*8
            e(f"ds_read_b128 {vr(f,4)}, v{vAr} offset:{so+s*1024}")
            for r in range(2): e(f"ds_read_b64_tr_b16 {vr(f+4+2*r,2)}, v{vWr} offset:{so+(4*s+2*r)*512}")
        rd(0); rd(1); rd(2)
        acc=ACC if st<4 else ACC+16
        for s in range(8):
            if s+3<8: rd(s+3); e("s_waitcnt lgkmcnt(9)")
            else: e(f"s_waitcnt lgkmcnt({(7-s)*3})")
            f=FR+(s%4)*8
            mfma(e,acc,f+4,f)
    e("v_sub_f32 v15, 1.0, v14")
    e("v_and_b32 v12, 31, v2\nv_lshlrev_b32 v4, 10, v12\nv_lshrrev_b32 v12, 5, v2\nv_lshl_add_u32 v4, v12, 4, v4")
    e("s_lshl_b32 s30, s33, 15\ns_lshl_b32 s27, s18, 7\ns_add_u32 s30, s30, s27\ns_and_b32 s27, s16, 1\ns_lshl_b32 s27, s27, 6\ns_add_u32 s30, s30, s27")
    e("s_nop 7\ns_nop 7")
    for i in range(16):
        e(f"v_mul_f32 v{ACC+i}, v14, v{ACC+i}")
        e(f"v_fma_f32 v{ACC+i}, v15, v{ACC+16+i}, v{ACC+i}")
    cvt8(e,FR,ACC); cvt8(e,FR+4,ACC+8)
    e(f"buffer_store_dwordx4 {vr(FR,4)}, v4, s[36:39], s30 offen")
    e(f"buffer_store_dwordx4 {vr(FR+4,4)}, v4, s[36:39], s30 offen offset:32")
    e("L_fin_done:\ns_endpgm")
    return n, kd(n,80,48), f"; @launch kernel={n} grid=(256,1,1) block=(256,1,1) lds={NS*SB}"

def main(out):
    launches=[]; body=""
    for k in (k_qkv,k_gu,k_att,k_fin):
        e=A(); n,d,l=k(e); launches.append(l); body+=e.text()+d
    hdr=open(f"cdna_kernels/{NAME}.s.ref").read().split("; Override")[0]
    open(out,"w").write(hdr+"\n".join(launches)+'\n.amdgcn_target "amdgcn-amd-amdhsa--gfx950"\n.text\n'+body)
main(sys.argv[1] if len(sys.argv)>1 else f"cdna_kernels/{NAME}.s")
```

```python
import sys
QF=0x000000; KVF=0x200000; AF=0x600000; G=0xF00000
WS_BYTES=0x2000000
NAME="gated_mix__softmax_full_mha__glu_gated_bilinear__prompt"

class A:
    def __init__(s): s.l=[]
    def __call__(s, t):
        for x in t.split("\n"):
            x=x.strip()
            if x: s.l.append(("" if x.endswith(":") else "    ")+x)
    def text(s): return "\n".join(s.l)+"\n"
def vr(b,n): return f"v[{b}:{b+n-1}]"
def sr(b,n): return f"s[{b}:{b+n-1}]"
def f32hex(x):
    import struct; return "0x%08x"%struct.unpack("<I",struct.pack("<f",x))[0]

def srd(e, d, p, nbytes):
    e(f"s_mov_b32 s{d}, s{p}")
    e(f"s_and_b32 s{d+1}, s{p+1}, 0xffff")
    e(f"s_mov_b32 s{d+2}, {nbytes}")
    e(f"s_mov_b32 s{d+3}, 0x00020000")

INSTR=False
TS=0x1800000
def header(e, name):
    e(f".globl {name}\n.p2align 8\n.type {name},@function\n{name}:")
    if INSTR: e("s_memrealtime s[60:61]\ns_memtime s[64:65]")
def stamp(e, idx):
    if INSTR: e(f"s_memtime s[{68+2*idx}:{69+2*idx}]")
def footer(e, kidx, wssrd=12):
    if INSTR:
        e("s_waitcnt vmcnt(0)\ns_memrealtime s[62:63]\ns_memtime s[66:67]\ns_waitcnt lgkmcnt(0)")
        e("v_mov_b32 v4, s60\nv_mov_b32 v5, s62\nv_mov_b32 v6, s64\nv_mov_b32 v7, s66")
        e("v_mov_b32 v8, s68\nv_mov_b32 v9, s70\nv_mov_b32 v10, s72\nv_mov_b32 v11, s74")
        e(f"s_lshl_b32 s30, s2, 4\ns_add_u32 s30, s30, s16\ns_lshl_b32 s30, s30, 5\ns_add_u32 s30, s30, {TS}+{kidx}*0x40000")
        e("v_mov_b32 v12, 0\ns_mov_b64 exec, 1")
        e(f"buffer_store_dwordx4 v[4:7], v12, s[{wssrd}:{wssrd+3}], s30 offen")
        e(f"buffer_store_dwordx4 v[8:11], v12, s[{wssrd}:{wssrd+3}], s30 offen offset:16")
def kd(name, vg, sg=102):
    if INSTR: sg=80
    acc=(vg+3)//4*4
    return f""".section .rodata,"a"
.p2align 6
.amdhsa_kernel {name}
  .amdhsa_next_free_vgpr {vg}
  .amdhsa_next_free_sgpr {sg}
  .amdhsa_accum_offset {acc}
  .amdhsa_group_segment_fixed_size 0
  .amdhsa_kernarg_size 88
  .amdhsa_user_sgpr_count 2
  .amdhsa_user_sgpr_kernarg_segment_ptr 1
  .amdhsa_system_sgpr_workgroup_id_x 1
.end_amdhsa_kernel
.text
"""
def mfma(e,d,a,b,c=None):
    cc = vr(d,16) if c is None else c
    e(f"v_mfma_f32_32x32x16_bf16 {vr(d,16)}, {vr(a,4)}, {vr(b,4)}, {cc}")
def dma(e, voff, s, soff, m0base, m0imm, ioff=0, stmp=30):
    e(f"s_add_u32 m0, s{m0base}, {m0imm}")
    if soff==0: so="0"; e("s_nop 0")
    else:
        e(f"s_mov_b32 s{stmp}, {soff}"); so=f"s{stmp}"
    e(f"buffer_load_dwordx4 v{voff}, {sr(s,4)}, {so} offen{' offset:%d'%ioff if ioff else ''} lds")

def xread_addrs(e, vX, vlane, tmp, wave_off_sgpr):
    e(f"v_and_b32 v{tmp}, 31, v{vlane}")
    e(f"v_lshlrev_b32 v{vX}, 7, v{tmp}")
    e(f"v_bfe_u32 v{tmp}, v{vlane}, 1, 3")
    e(f"v_lshrrev_b32 v{tmp+1}, 5, v{vlane}")
    e(f"v_xor_b32 v{tmp}, v{tmp}, v{tmp+1}")
    e(f"v_lshl_add_u32 v{vX}, v{tmp}, 4, v{vX}")
    e(f"v_add_u32 v{vX}, s{wave_off_sgpr}, v{vX}")
    for s in range(1,4): e(f"v_xor_b32 v{vX+s}, {s<<5}, v{vX}")
def xsrc_addr(e, vS, vlane, tmp, s_row0, s_wave, stmp):
    e(f"s_lshl_b32 s{stmp}, s{s_wave}, 3")
    e(f"s_add_u32 s{stmp}, s{stmp}, s{s_row0}")
    e(f"v_lshrrev_b32 v{tmp}, 3, v{vlane}")
    e(f"v_add_u32 v{tmp}, s{stmp}, v{tmp}")
    e(f"v_lshlrev_b32 v{vS}, 10, v{tmp}")
    e(f"s_and_b32 s{stmp}, s{s_wave}, 1")
    e(f"s_lshl_b32 s{stmp}, s{stmp}, 2")
    e(f"v_lshrrev_b32 v{tmp}, 4, v{vlane}")
    e(f"v_add_u32 v{tmp}, s{stmp}, v{tmp}")
    e(f"v_and_b32 v{tmp+1}, 7, v{vlane}")
    e(f"v_xor_b32 v{tmp}, v{tmp}, v{tmp+1}")
    e(f"v_lshl_add_u32 v{vS}, v{tmp}, 4, v{vS}")
def tr_lane_part(e, vD, vlane, tmp, swap23=False):
    e(f"v_bfe_u32 v{tmp}, v{vlane}, 2, 2")
    e(f"v_lshlrev_b32 v{vD}, 6, v{tmp}")
    e(f"v_bfe_u32 v{tmp}, v{vlane}, 4, 1")
    e(f"v_lshl_add_u32 v{vD}, v{tmp}, 5, v{vD}")
    if not swap23:
        e(f"v_and_b32 v{tmp}, 3, v{vlane}")
        e(f"v_lshl_add_u32 v{vD}, v{tmp}, 3, v{vD}")
    else:
        e(f"v_and_b32 v{tmp}, 1, v{vlane}")
        e(f"v_lshl_add_u32 v{vD}, v{tmp}, 4, v{vD}")
        e(f"v_bfe_u32 v{tmp}, v{vlane}, 1, 1")
        e(f"v_lshl_add_u32 v{vD}, v{tmp}, 3, v{vD}")
def prologue_ids(e, nwg, lab):
    e(f"s_cmp_ge_u32 s2, {nwg}")
    e(f"s_cbranch_scc1 {lab}")
    e("v_lshrrev_b32 v1, 6, v0")
    e("v_and_b32 v2, 63, v0")
    e("v_readfirstlane_b32 s16, v1")
def cvt8(e, d, s):
    for i in range(4): e(f"v_cvt_pk_bf16_f32 v{d+i}, v{s+2*i}, v{s+2*i+1}")

def k_qkv(e):
    n="k1_qkv_kernel"; header(e,n)
    NS=5; SB=28672
    e("s_load_dwordx4 s[20:23], s[0:1], 0")
    e("s_load_dwordx2 s[24:25], s[0:1], 80")
    prologue_ids(e,256,"L_qkv_done")
    e("s_and_b32 s19, s2, 7\ns_lshr_b32 s26, s2, 3")
    e("s_lshr_b32 s17, s19, 1\ns_lshl_b32 s17, s17, 2\ns_lshr_b32 s27, s26, 3\ns_add_u32 s17, s17, s27")
    e("s_and_b32 s18, s19, 1\ns_lshl_b32 s18, s18, 3\ns_and_b32 s27, s26, 7\ns_add_u32 s18, s18, s27")
    e("s_lshl_b32 s28, s17, 7")
    vXs,vWs,vXr,vWr=4,5,6,10
    xsrc_addr(e,vXs,2,12,28,16,27)
    e("s_lshl_b32 s27, s16, 4\nv_lshrrev_b32 v12, 2, v2\nv_add_u32 v12, s27, v12\nv_mul_u32_u24 v5, 3072, v12")
    e("v_and_b32 v12, 3, v2\nv_lshl_add_u32 v5, v12, 4, v5\ns_lshl_b32 s27, s18, 6\nv_add_u32 v5, s27, v5")
    e("s_lshl_b32 s29, s16, 10")
    e("s_waitcnt lgkmcnt(0)")
    srd(e,4,20,2048*1024); srd(e,8,22,512*3072); srd(e,12,24,WS_BYTES)
    def issue(st):
        sb=(st%NS)*SB
        for qq in range(4): dma(e,vXs,4,st*128+qq*32768,29,sb+qq*4096)
        for b in range(3): dma(e,vWs,8,st*64*3072+b*1024,29,sb+16384+b*4096)
    for st in range(NS): issue(st)
    e("s_lshl_b32 s27, s16, 12")
    xread_addrs(e,vXr,2,12,27)
    tr_lane_part(e,vWr,2,12)
    e("v_lshrrev_b32 v12, 5, v2\nv_lshl_add_u32 v10, v12, 9, v10\nv_add_u32 v10, 16384, v10")
    ACC=16
    for i in range(48): e(f"v_mov_b32 v{ACC+i}, 0")
    FR=64
    cur=0
    issued=NS
    for st in range(8):
        e(f"s_waitcnt vmcnt({(issued-1-st)*7})")
        e("s_barrier")
        if st==0: stamp(e,0)
        if st==4: stamp(e,1)
        if st==7: stamp(e,2)
        if st>=1 and st-1+NS<8:
            issue(st-1+NS); issued+=1
        slot=st%NS; base=(slot//2)*2*SB
        if base!=cur:
            for r in [vXr,vXr+1,vXr+2,vXr+3,vWr]: e(f"v_add_u32 v{r}, {(base-cur)&0xffffffff}, v{r}")
            cur=base
        so=slot*SB-base
        def rd(s):
            f=FR+(s%2)*16
            e(f"ds_read_b128 {vr(f,4)}, v{vXr+s} offset:{so}")
            for b in range(3):
                for r in range(2):
                    e(f"ds_read_b64_tr_b16 {vr(f+4+4*b+2*r,2)}, v{vWr} offset:{so+b*4096+(4*s+r)*256}")
        rd(0)
        for s in range(4):
            if s<3: rd(s+1); e("s_waitcnt lgkmcnt(7)")
            else: e("s_waitcnt lgkmcnt(0)")
            f=FR+(s%2)*16
            mfma(e,ACC,f+4,f); mfma(e,ACC+16,f+8,f); mfma(e,ACC+32,f,f+12)
    e("s_lshl_b32 s27, s17, 2\ns_add_u32 s27, s27, s16")
    e("v_lshlrev_b32 v4, 4, v2")
    e("s_lshl_b32 s30, s18, 17\ns_lshl_b32 s31, s27, 10\ns_add_u32 s30, s30, s31")
    e("s_lshl_b32 s32, s18, 18\ns_lshl_b32 s31, s27, 11\ns_add_u32 s32, s32, s31")
    e(f"s_add_u32 s32, s32, {KVF}")
    e(f"s_add_u32 s31, s30, 65536\ns_add_u32 s33, s32, 131072")
    e("v_bfe_u32 v12, v2, 4, 1\nv_lshlrev_b32 v5, 17, v12\nv_lshrrev_b32 v12, 5, v2\nv_lshl_add_u32 v5, v12, 8, v5")
    e("v_and_b32 v12, 15, v2\nv_lshl_add_u32 v5, v12, 4, v5")
    e(f"s_mov_b32 s34, {f32hex(0.25*1.4426950408889634)}")
    e("s_nop 7\ns_nop 7")
    for i in range(16): e(f"v_mul_f32 v{ACC+i}, s34, v{ACC+i}")
    for t in range(6): cvt8(e,FR+4*t,ACC+8*t)
    e(f"buffer_store_dwordx4 {vr(FR,4)}, v4, s[12:15], s30 offen")
    e(f"buffer_store_dwordx4 {vr(FR+4,4)}, v4, s[12:15], s31 offen")
    e(f"buffer_store_dwordx4 {vr(FR+8,4)}, v4, s[12:15], s32 offen")
    e(f"buffer_store_dwordx4 {vr(FR+12,4)}, v4, s[12:15], s33 offen")
    e(f"buffer_store_dwordx4 {vr(FR+16,4)}, v5, s[12:15], s32 offen offset:1024")
    e(f"buffer_store_dwordx4 {vr(FR+20,4)}, v5, s[12:15], s32 offen offset:1536")
    footer(e,0)
    e("L_qkv_done:\ns_endpgm")
    return n, kd(n,96,40), f"; @launch kernel={n} grid=(256,1,1) block=(256,1,1) lds={NS*SB}"

def k_gu(e):
    n="k1_gu_kernel"; header(e,n)
    NS=3; SB=49152
    e("s_load_dwordx2 s[20:21], s[0:1], 0")
    e("s_load_dwordx4 s[36:39], s[0:1], 32")
    e("s_load_dwordx2 s[24:25], s[0:1], 80")
    prologue_ids(e,224,"L_gu_done")
    e("s_and_b32 s19, s2, 7\ns_lshr_b32 s26, s2, 3")
    e("s_mul_i32 s27, s26, 37\ns_lshr_b32 s27, s27, 8")
    e("s_lshr_b32 s17, s19, 1\ns_lshl_b32 s17, s17, 2\ns_add_u32 s17, s17, s27")
    e("s_mul_i32 s27, s27, 7\ns_sub_u32 s27, s26, s27")
    e("s_and_b32 s18, s19, 1\ns_mul_i32 s18, s18, 7\ns_add_u32 s18, s18, s27")
    e("s_lshl_b32 s28, s17, 7")
    vXs,vWs,vXr,vWr=4,5,6,10
    xsrc_addr(e,vXs,2,12,28,16,27)
    e("s_lshl_b32 s27, s16, 2\nv_bfe_u32 v12, v2, 2, 2\nv_add_u32 v12, s27, v12\nv_mul_u32_u24 v5, 3584, v12")
    e("v_lshrrev_b32 v12, 4, v2\nv_lshl_add_u32 v5, v12, 6, v5")
    e("v_and_b32 v12, 3, v2\nv_lshl_add_u32 v5, v12, 4, v5\ns_lshl_b32 s27, s18, 8\nv_add_u32 v5, s27, v5")
    e("s_lshl_b32 s29, s16, 10")
    e("s_waitcnt lgkmcnt(0)")
    srd(e,4,20,2048*1024); srd(e,8,36,512*3584); srd(e,40,38,512*3584); srd(e,12,24,WS_BYTES)
    def issue(st):
        sb=(st%NS)*SB
        for qq in range(2): dma(e,vXs,4,st*128+qq*65536,29,sb+qq*8192)
        for m,s in ((0,8),(1,40)):
            for qq in range(2): dma(e,vWs,s,(st*64+32*qq)*3584,29,sb+16384+m*16384+qq*8192)
    for st in range(NS): issue(st)
    e("s_and_b32 s27, s16, 1\ns_lshl_b32 s27, s27, 13")
    xread_addrs(e,vXr,2,12,27)
    tr_lane_part(e,vWr,2,12)
    e("v_lshrrev_b32 v12, 5, v2\nv_lshl_add_u32 v10, v12, 11, v10")
    e("s_lshr_b32 s27, s16, 1\ns_lshl_b32 s27, s27, 8\ns_add_u32 s27, s27, 16384\nv_add_u32 v10, s27, v10")
    ACC=16
    for i in range(64): e(f"v_mov_b32 v{ACC+i}, 0")
    FR=80
    cur=0; issued=NS
    for st in range(8):
        e(f"s_waitcnt vmcnt({(issued-1-st)*6})")
        e("s_barrier")
        if st==0: stamp(e,0)
        if st==4: stamp(e,1)
        if st==7: stamp(e,2)
        if st>=1 and st-1+NS<8:
            issue(st-1+NS); issued+=1
        base=(st%NS)*SB
        if base!=cur:
            for r in [vXr,vXr+1,vXr+2,vXr+3,vWr]: e(f"v_add_u32 v{r}, {(base-cur)&0xffffffff}, v{r}")
            cur=base
        def rd(s):
            f=FR+(s%2)*16
            for t in range(2): e(f"ds_read_b128 {vr(f+4*t,4)}, v{vXr+s} offset:{t*4096}")
            for m in range(2):
                for r in range(2):
                    e(f"ds_read_b64_tr_b16 {vr(f+8+4*m+2*r,2)}, v{vWr} offset:{m*16384+(4*s+r)*1024}")
        rd(0)
        for s in range(4):
            if s<3: rd(s+1); e("s_waitcnt lgkmcnt(6)")
            else: e("s_waitcnt lgkmcnt(0)")
            f=FR+(s%2)*16
            for t in range(2):
                for m in range(2): mfma(e,ACC+32*t+16*m,f+8+4*m,f+4*t)
    e("s_lshl_b32 s27, s17, 2\ns_and_b32 s30, s16, 1\ns_lshl_b32 s30, s30, 1\ns_add_u32 s27, s27, s30")
    e(f"s_mul_i32 s27, s27, {144*1024}")
    e("s_lshl_b32 s30, s18, 2\ns_lshr_b32 s31, s16, 1\ns_add_u32 s30, s30, s31\ns_lshl_b32 s30, s30, 11")
    e(f"s_add_u32 s30, s30, s27\ns_add_u32 s30, s30, {AF+32*1024}")
    e(f"s_add_u32 s31, s30, {144*1024}")
    e("v_lshlrev_b32 v4, 4, v2")
    e("s_nop 7\ns_nop 7")
    for t in range(2):
        for i in range(16): e(f"v_mul_f32 v{ACC+32*t+i}, v{ACC+32*t+i}, v{ACC+32*t+16+i}")
        cvt8(e,FR+8*t,ACC+32*t); cvt8(e,FR+8*t+4,ACC+32*t+8)
        e(f"buffer_store_dwordx4 {vr(FR+8*t,4)}, v4, s[12:15], s{30+t} offen")
        e(f"buffer_store_dwordx4 {vr(FR+8*t+4,4)}, v4, s[12:15], s{30+t} offen offset:1024")
    footer(e,1)
    e("L_gu_done:\ns_endpgm")
    return n, kd(n,112,48), f"; @launch kernel={n} grid=(224,1,1) block=(512,1,1) lds={NS*SB}"

def k_att(e):
    n="k2_att_kernel"; header(e,n)
    e("s_load_dwordx2 s[20:21], s[0:1], 0")
    e("s_load_dwordx2 s[22:23], s[0:1], 56")
    e("s_load_dwordx2 s[24:25], s[0:1], 80")
    prologue_ids(e,256,"L_att_done")
    e("s_and_b32 s19, s2, 7\ns_lshr_b32 s26, s2, 3")
    e("s_lshl_b32 s17, s19, 2\ns_and_b32 s27, s26, 3\ns_add_u32 s17, s17, s27")
    e("s_lshr_b32 s18, s26, 2\ns_lshl_b32 s18, s18, 3\ns_add_u32 s18, s18, s16")
    vQ,vC,S,O,Kf,Vf,P=4,16,(32,48),64,(80,84),((88,92),(96,100)),(104,108)
    vL16,vKa,vVa,vD=3,8,9,10
    e("v_lshlrev_b32 v3, 4, v2")
    e("s_lshl_b32 s29, s16, 11")
    e("v_add_u32 v10, s29, v3")
    e(f"s_lshl_b32 s28, s17, 17\ns_add_u32 s28, s28, {KVF}")
    e("s_waitcnt lgkmcnt(0)")
    stamp(e,0)
    srd(e,12,24,WS_BYTES); srd(e,4,20,2048*1024); srd(e,8,22,1024)
    e(f"s_lshl_b32 s30, s17, 16\ns_lshl_b32 s31, s18, 10\ns_add_u32 s30, s30, s31")
    e(f"buffer_load_dwordx4 {vr(vQ,4)}, v3, s[12:15], s30 offen")
    def kvround(r):
        e(f"s_add_u32 m0, s29, {r*16384}")
        e(f"s_add_u32 s30, s28, {r*16384}")
        e(f"buffer_load_dwordx4 v{vD}, s[12:15], s30 offen lds")
        e(f"buffer_load_dwordx4 v{vD}, s[12:15], s30 offen offset:1024 lds")
    kvround(0)
    e("s_lshl_b32 s31, s2, 3\ns_add_u32 s31, s31, s16")
    e("s_lshl_b32 s30, s31, 10")
    e(f"buffer_load_dwordx4 v[32:35], v3, s[4:7], s30 offen")
    e(f"buffer_load_dwordx4 v[36:39], v3, s[8:11], 0 offen")
    for r in range(1,8): kvround(r)
    e("v_mov_b32 v8, v3")
    e("v_lshrrev_b32 v12, 5, v2\nv_lshlrev_b32 v9, 8, v12\nv_and_b32 v12, 15, v2\nv_lshl_add_u32 v9, v12, 4, v9\nv_add_u32 v9, 1024, v9")
    e("s_mov_b32 s36, 0x0000ffff\ns_mov_b32 s37, 0x0000ffff")
    for i in range(16): e(f"v_mov_b32 v{Vf[0][0]+i}, 0x3f803f80")
    stamp(e,1)
    e("s_waitcnt vmcnt(14)")
    stamp(e,2)
    e("v_dot2_f32_bf16 v40, v32, v36, 0")
    e("v_dot2_f32_bf16 v40, v33, v37, v40")
    e("v_dot2_f32_bf16 v40, v34, v38, v40")
    e("v_dot2_f32_bf16 v40, v35, v39, v40")
    e("s_nop 3")
    for sh in (1,2,4,8):
        e(f"v_add_f32_dpp v40, v40, v40 row_shr:{sh} row_mask:0xf bank_mask:0xf bound_ctrl:0")
        e("s_nop 1")
    e("v_add_f32_dpp v40, v40, v40 row_bcast:15 row_mask:0xa bank_mask:0xf\ns_nop 1")
    e("v_add_f32_dpp v40, v40, v40 row_bcast:31 row_mask:0xc bank_mask:0xf\ns_nop 1")
    e(f"v_mul_f32 v40, {f32hex(-1.4426950408889634)}, v40")
    e("v_exp_f32 v40, v40\ns_nop 0\nv_add_f32 v40, 1.0, v40\nv_rcp_f32 v40, v40")
    e(f"s_lshl_b32 s30, s31, 2\ns_add_u32 s30, s30, {G}")
    e("v_mov_b32 v41, 0")
    e("s_mov_b32 s38, 0\ns_brev_b32 s39, 1\ns_mov_b64 exec, s[38:39]")
    e("buffer_store_dword v40, v41, s[12:15], s30 offen")
    e("s_mov_b64 exec, -1")
    e("s_barrier")
    stamp(e,3)
    e(f"ds_read_b128 {vr(Kf[0],4)}, v{vKa}")
    e("s_waitcnt lgkmcnt(0)")
    mfma(e,S[0],Kf[0],vQ,"0")
    e("s_nop 15")
    def maxtree(dst, src, init):
        k=0
        if init:
            e(f"v_max3_f32 v{dst}, v{src}, v{src+1}, v{src+2}"); k=3
            e(f"v_max_f32 v{dst}, v{dst}, v{src+3}"); k=4
        while k<16:
            e(f"v_max3_f32 v{dst}, v{dst}, v{src+k}, v{src+k+1}"); k+=2
    maxtree(12,S[0],True)
    e("s_mov_b32 s40, 0")
    e("L_att_setc:")
    e("v_mov_b32 v13, v12\ns_nop 1\nv_permlane32_swap_b32 v12, v13\ns_nop 1\nv_max_f32 v12, v12, v13")
    for i in range(16): e(f"v_sub_f32 v{vC+i}, 0, v12")
    for i in range(16): e(f"v_mov_b32 v{O+i}, 0")
    for i in range(4): e(f"v_mov_b32 v{P[1]+i}, 0")
    e(f"ds_read_b128 {vr(Kf[0],4)}, v{vKa}")
    e(f"ds_read_b128 {vr(Kf[1],4)}, v{vKa} offset:2048")
    e("s_mov_b64 exec, s[36:37]")
    e(f"ds_read_b128 {vr(Vf[0][0],4)}, v{vVa}")
    e(f"ds_read_b128 {vr(Vf[0][1],4)}, v{vVa} offset:512")
    e(f"ds_read_b128 {vr(Vf[1][1],4)}, v{vVa} offset:512")
    e("s_mov_b64 exec, -1")
    e("s_waitcnt lgkmcnt(0)")
    mfma(e,S[0],Kf[0],vQ,vr(vC,16))
    e("s_nop 15")
    def body(wait=None):
        for i in range(8):
            p=i%2; s=S[p]
            if wait is not None and i==6:
                e(f"s_waitcnt vmcnt({wait})\ns_barrier")
            e("s_waitcnt lgkmcnt(0)")
            mfma(e,S[1-p],Kf[1-p],vQ,vr(vC,16))
            for j in (0,1): e(f"v_exp_f32 v{s+j}, v{s+j}")
            mfma(e,O,Vf[1-p][1],P[1])
            e(f"ds_read_b128 {vr(Kf[p],4)}, v{vKa} offset:{(i+2)*2048}")
            e("s_mov_b64 exec, s[36:37]")
            e(f"ds_read_b128 {vr(Vf[1-p][0],4)}, v{vVa} offset:{(i+1)*2048}")
            e(f"ds_read_b128 {vr(Vf[1-p][1],4)}, v{vVa} offset:{(i+1)*2048+512}")
            e("s_mov_b64 exec, -1")
            for j in range(2,8): e(f"v_exp_f32 v{s+j}, v{s+j}")
            cvt8(e,P[0],s)
            for j in (8,9): e(f"v_exp_f32 v{s+j}, v{s+j}")
            mfma(e,O,Vf[p][0],P[0])
            for j in range(10,16): e(f"v_exp_f32 v{s+j}, v{s+j}")
            cvt8(e,P[1],s+8)
        e(f"v_add_u32 v{vKa}, 16384, v{vKa}\nv_add_u32 v{vVa}, 16384, v{vVa}")
    e("s_mov_b32 s41, 8")
    e("s_cmp_lg_u32 s40, 0\ns_cbranch_scc1 L_att_loop")
    body(13)
    body(0)
    e("s_mov_b32 s41, 6")
    e(".p2align 6\nL_att_loop:")
    body()
    e("s_sub_u32 s41, s41, 1\ns_cmp_lg_u32 s41, 0\ns_cbranch_scc1 L_att_loop")
    e("s_nop 1")
    mfma(e,O,Vf[1][1],P[1])
    e("s_waitcnt lgkmcnt(0)")
    e("s_nop 15")
    e(f"v_mov_b32 v12, v{O+8}")
    for i in range(8): e(f"v_fma_f32 v12, v{O+i}, 0, v12")
    e(f"s_mov_b32 s42, {f32hex(2.0**40)}")
    e(f"v_cmp_gt_f32 vcc, s42, v12")
    e("s_cmp_lg_u32 s40, 0\ns_cbranch_scc1 L_att_fin")
    e("s_cmp_eq_u64 vcc, exec\ns_cbranch_scc1 L_att_fin")
    e("s_mov_b32 s40, 1")
    e(f"v_mov_b32 v{vKa}, v3")
    e(f"v_subrev_u32 v{vVa}, 131072, v{vVa}")
    e("v_mov_b32 v12, 0xff800000")
    e("s_mov_b32 s41, 64")
    e("L_att_max:")
    e(f"ds_read_b128 {vr(Kf[0],4)}, v{vKa}")
    e("s_waitcnt lgkmcnt(0)")
    mfma(e,S[0],Kf[0],vQ,"0")
    e(f"v_add_u32 v{vKa}, 2048, v{vKa}")
    e("s_nop 15")
    maxtree(12,S[0],False)
    e("s_sub_u32 s41, s41, 1\ns_cmp_lg_u32 s41, 0\ns_cbranch_scc1 L_att_max")
    e(f"v_mov_b32 v{vKa}, v3")
    e("s_branch L_att_setc")
    e("L_att_fin:")
    e(f"v_rcp_f32 v12, v{O+8}\ns_nop 0")
    for i in range(8): e(f"v_mul_f32 v{O+i}, v{O+i}, v12")
    cvt8(e,P[0],O)
    e(f"s_mul_i32 s30, s18, {144*1024}\ns_lshl_b32 s31, s17, 10\ns_add_u32 s30, s30, s31\ns_add_u32 s30, s30, {AF}")
    e(f"buffer_store_dwordx4 {vr(P[0],4)}, v3, s[12:15], s30 offen")
    footer(e,2)
    e("L_att_done:\ns_endpgm")
    return n, kd(n,112,48), f"; @launch kernel={n} grid=(256,1,1) block=(512,1,1) lds={131072+4096}"

def k_fin(e):
    n="k3_fin_kernel"; header(e,n)
    NS=4; SB=32768; NST=18
    e("s_load_dwordx2 s[20:21], s[0:1], 16")
    e("s_load_dwordx2 s[22:23], s[0:1], 48")
    e("s_load_dwordx2 s[24:25], s[0:1], 80")
    e("s_load_dwordx2 s[34:35], s[0:1], 64")
    prologue_ids(e,256,"L_fin_done")
    e("s_and_b32 s19, s2, 7\ns_lshr_b32 s26, s2, 3")
    e("s_lshl_b32 s17, s19, 2\ns_lshr_b32 s27, s26, 3\ns_add_u32 s17, s17, s27")
    e("s_and_b32 s18, s26, 7")
    vAs,vWs,vAr,vWr=4,5,6,7
    e("s_lshl_b32 s27, s17, 1\ns_lshr_b32 s28, s16, 1\ns_add_u32 s33, s27, s28")
    e(f"s_mul_i32 s27, s33, {144*1024}\ns_and_b32 s28, s16, 1\ns_lshl_b32 s28, s28, 12\ns_add_u32 s27, s27, s28\ns_add_u32 s27, s27, {AF}")
    e("v_lshlrev_b32 v3, 4, v2\nv_add_u32 v4, s27, v3")
    e("v_lshrrev_b32 v12, 5, v2\nv_lshlrev_b32 v5, 12, v12\nv_bfe_u32 v12, v2, 2, 2\nv_lshl_add_u32 v5, v12, 10, v5")
    e("v_bfe_u32 v12, v2, 4, 1\nv_lshl_add_u32 v5, v12, 6, v5\nv_and_b32 v12, 3, v2\nv_lshl_add_u32 v5, v12, 4, v5")
    e("s_lshl_b32 s27, s16, 15\ns_lshl_b32 s28, s18, 7\ns_add_u32 s27, s27, s28\nv_add_u32 v5, s27, v5")
    e("s_lshl_b32 s29, s16, 12")
    e("s_waitcnt lgkmcnt(0)")
    srd(e,4,20,512*1024); srd(e,8,22,1792*1024); srd(e,12,24,WS_BYTES); srd(e,36,34,2048*1024)
    e(f"v_and_b32 v12, 31, v2\nv_lshlrev_b32 v12, 2, v12\ns_lshl_b32 s30, s33, 7\ns_add_u32 s30, s30, {G}")
    e("buffer_load_dword v14, v12, s[12:15], s30 offen")
    def issue(st):
        sb=(st%NS)*SB
        e(f"s_add_u32 m0, s29, {sb}")
        e(f"s_mov_b32 s30, {st*8192}")
        for q in range(4): e(f"buffer_load_dwordx4 v{vAs}, s[12:15], s30 offen offset:{q*1024} lds")
        s,row=(4,st*128) if st<4 else (8,(st-4)*128)
        for q in range(4): dma(e,vWs,s,row*1024+q*8192,29,sb+16384+q*1024)
    for st in range(NS): issue(st)
    e("s_lshr_b32 s27, s16, 1\ns_lshl_b32 s27, s27, 13\nv_add_u32 v6, s27, v3")
    tr_lane_part(e,vWr,2,12,swap23=True)
    e("v_lshrrev_b32 v12, 5, v2\nv_lshl_add_u32 v7, v12, 9, v7")
    e("s_and_b32 s27, s16, 1\ns_lshl_b32 s27, s27, 8\ns_add_u32 s27, s27, 16384\nv_add_u32 v7, s27, v7")
    ACC=16
    for i in range(32): e(f"v_mov_b32 v{ACC+i}, 0")
    FR=48
    cur=0; issued=NS
    for st in range(NST):
        e(f"s_waitcnt vmcnt({(issued-1-st)*8})")
        e("s_barrier")
        if st==0: stamp(e,0)
        if st==4: stamp(e,1)
        if st==17: stamp(e,2)
        if st>=1 and st-1+NS<NST:
            issue(st-1+NS); issued+=1
        slot=st%NS; base=(slot//2)*2*SB
        if base!=cur:
            for r in [vAr,vWr]: e(f"v_add_u32 v{r}, {(base-cur)&0xffffffff}, v{r}")
            cur=base
        so=slot*SB-base
        def rd(s):
            f=FR+(s%4)*8
            e(f"ds_read_b128 {vr(f,4)}, v{vAr} offset:{so+s*1024}")
            for r in range(2): e(f"ds_read_b64_tr_b16 {vr(f+4+2*r,2)}, v{vWr} offset:{so+(4*s+2*r)*512}")
        rd(0); rd(1); rd(2)
        acc=ACC if st<4 else ACC+16
        for s in range(8):
            if s+3<8: rd(s+3); e("s_waitcnt lgkmcnt(9)")
            else: e(f"s_waitcnt lgkmcnt({(7-s)*3})")
            f=FR+(s%4)*8
            mfma(e,acc,f+4,f)
    e("v_sub_f32 v15, 1.0, v14")
    e("v_and_b32 v12, 31, v2\nv_lshlrev_b32 v4, 10, v12\nv_lshrrev_b32 v12, 5, v2\nv_lshl_add_u32 v4, v12, 4, v4")
    e("s_lshl_b32 s30, s33, 15\ns_lshl_b32 s27, s18, 7\ns_add_u32 s30, s30, s27\ns_and_b32 s27, s16, 1\ns_lshl_b32 s27, s27, 6\ns_add_u32 s30, s30, s27")
    e("s_nop 7\ns_nop 7")
    for i in range(16):
        e(f"v_mul_f32 v{ACC+i}, v14, v{ACC+i}")
        e(f"v_fma_f32 v{ACC+i}, v15, v{ACC+16+i}, v{ACC+i}")
    cvt8(e,FR,ACC); cvt8(e,FR+4,ACC+8)
    e(f"buffer_store_dwordx4 {vr(FR,4)}, v4, s[36:39], s30 offen")
    e(f"buffer_store_dwordx4 {vr(FR+4,4)}, v4, s[36:39], s30 offen offset:32")
    footer(e,3)
    e("L_fin_done:\ns_endpgm")
    return n, kd(n,80,48), f"; @launch kernel={n} grid=(256,1,1) block=(256,1,1) lds={NS*SB}"

def main(out):
    launches=[]; body=""
    for k in (k_qkv,k_gu,k_att,k_fin):
        e=A(); n,d,l=k(e); launches.append(l); body+=e.text()+d
    hdr=open(f"cdna_kernels/{NAME}.s.ref").read().split("; Override")[0]
    open(out,"w").write(hdr+"\n".join(launches)+'\n.amdgcn_target "amdgcn-amd-amdhsa--gfx950"\n.text\n'+body)
if "--instr" in sys.argv: INSTR=True
main(sys.argv[1] if len(sys.argv)>1 else f"cdna_kernels/{NAME}.s")
```
